```python
import torch

def _softmax(x, axis=-1):
    return torch.softmax(x, dim=axis)
def _gelu(x):
    return torch.nn.functional.gelu(x, approximate="tanh")
def _silu(x):
    return torch.nn.functional.silu(x)
def _sigmoid(x):
    return torch.sigmoid(x)
def _layernorm(x, axis=-1, eps=1e-5):
    m = x.mean(dim=axis, keepdim=True)
    v = x.var(dim=axis, keepdim=True, unbiased=False)
    return (x - m) / torch.sqrt(v + eps)
def _scatter_add(tgt, idx, src, axis=0):
    return tgt.clone().index_add_(axis, idx, src)
def _segment_sum(src, seg, n):
    out = torch.zeros((n,) + src.shape[1:], dtype=src.dtype)
    return out.index_add_(0, seg, src)
def _pad(x, pw):
    flat = tuple(v for pair in reversed(pw) for v in pair)
    return torch.nn.functional.pad(x, flat)

kernel_name = 'parallel_sum__mha_block_cached__swiglu_ffn__decode'

def setup_inputs():

    _w = (lambda a: (lambda t: t.to(torch.bfloat16) if t.is_floating_point() else t)(torch.as_tensor(a)))
    def _A_setup():
        B, Sq, D = 1, 1, 640
        H, Sk, Dh = 32, 16384, 128
        return {
            "x": _w((lambda *s: torch.randn(*s, dtype=torch.bfloat16) * 0.05)(B, Sq, D)),
            "k_cache": _w((lambda *s: torch.randn(*s, dtype=torch.bfloat16) * 3.2)(B, H, Sk, Dh)),
            "v_cache": _w((lambda *s: torch.randn(*s, dtype=torch.bfloat16) * 1.6)(B, H, Sk, Dh)),
            "wq": _w((lambda *s: torch.randn(*s, dtype=torch.bfloat16) * 3.2)(D, H * Dh) * (D ** -0.5)),
            "wo": _w((lambda *s: torch.randn(*s, dtype=torch.bfloat16) * 1.6)(H * Dh, D) * ((H * Dh) ** -0.5)),
        }
    _A_in = _A_setup()

    def _B_setup():
        B, S, D, F = 1, 1, 640, 1728
        return {
            "x": _w((lambda *s: torch.randn(*s, dtype=torch.bfloat16) * 0.05)(B, S, D)),
            "w_gate": _w((lambda *s: torch.randn(*s, dtype=torch.bfloat16) * 0.05)(D, F)),
            "w_up": _w((lambda *s: torch.randn(*s, dtype=torch.bfloat16) * 0.05)(D, F)),
            "w_down": _w((lambda *s: torch.randn(*s, dtype=torch.bfloat16) * 0.05)(F, D)),
        }
    _B_in = _B_setup()

    return {
        "A_x": _A_in["x"],
        "A_k_cache": _A_in["k_cache"],
        "A_v_cache": _A_in["v_cache"],
        "A_wq": _A_in["wq"],
        "A_wo": _A_in["wo"],
        "B_x": _B_in["x"],
        "B_w_gate": _B_in["w_gate"],
        "B_w_up": _B_in["w_up"],
        "B_w_down": _B_in["w_down"],
    }

def reference(A_x, A_k_cache, A_v_cache, A_wq, A_wo, B_x, B_w_gate, B_w_up, B_w_down):
    def _A_ref(x, k_cache, v_cache, wq, wo):
        B, Sq, D = x.shape
        H, Dh = 32, 128
        q = (lambda x, *d: x.permute(*d))((x @ wq).reshape(B, Sq, H, Dh), 0, 2, 1, 3)
        scores = torch.einsum("bhqd,bhkd->bhqk", q, k_cache) * (Dh ** -0.5)
        p = _softmax(scores, axis=-1)
        o = torch.einsum("bhqk,bhkd->bhqd", p, v_cache)
        return (lambda x, *d: x.permute(*d))(o, 0, 2, 1, 3).reshape(B, Sq, H * Dh) @ wo

    def _B_ref(x, w_gate, w_up, w_down):
        g = _silu(x @ w_gate)
        u = x @ w_up
        return (g * u) @ w_down

    x = A_x
    xn = _layernorm(x, axis=-1)
    return x + _A_ref(xn, A_k_cache, A_v_cache, A_wq, A_wo) + _B_ref(xn, B_w_gate, B_w_up, B_w_down)
```

```python
import re

def _regs(tok):
    tok = tok.strip()
    tok = re.sub(r'^-', '', tok)
    m = re.match(r'^abs\((.*)\)$', tok)
    if m: tok = m.group(1)
    m = re.match(r'^\|(.*)\|$', tok)
    if m: tok = m.group(1)
    m = re.match(r'^([vas])(\d+)$', tok)
    if m: return {tok}
    m = re.match(r'^([vas])\[(\d+):(\d+)\]$', tok)
    if m: return {f"{m.group(1)}{i}" for i in range(int(m.group(2)), int(m.group(3)) + 1)}
    if tok in ('vcc', 'vcc_lo', 'vcc_hi'): return {'vcc'}
    if tok in ('exec', 'exec_lo', 'exec_hi'): return {'exec'}
    if tok == 'm0': return {'m0'}
    return set()

TRANS = ('v_exp_f32', 'v_log_f32', 'v_rcp_f32', 'v_rsq_f32', 'v_sqrt_f32')

class Ins:
    def __init__(self, text):
        self.text = text
        t = text.split(';')[0].strip()
        parts = t.split(None, 1)
        self.op = parts[0]
        rest = parts[1] if len(parts) > 1 else ''
        ops = []; cur = ''; depth = 0
        for ch in rest:
            if ch == '[': depth += 1
            if ch == ']': depth -= 1
            if ch == ',' and depth == 0: ops.append(cur); cur = ''
            else: cur += ch
        if cur.strip(): ops.append(cur)
        self.mods = ''
        if ops:
            l = ops[-1].strip().split(None, 1)
            ops[-1] = l[0]
            self.mods = l[1] if len(l) > 1 else ''
        self.ops = [o.strip() for o in ops]
        op = self.op
        self.is_mfma = op.startswith('v_mfma')
        self.is_valu = op.startswith('v_') and not self.is_mfma
        self.is_dl = op.startswith('v_dot')
        self.is_dpp = op.endswith('_dpp')
        self.is_trans = any(op.startswith(x) for x in TRANS)
        self.is_vmem = op.startswith(('buffer_', 'global_'))
        self.is_ds = op.startswith('ds_')
        self.is_salu = op.startswith('s_')
        self.w = set(); self.r = set(); self.srcC = set(); self.dppsrc = set(); self.storedata = set()
        o = self.ops
        if self.is_mfma:
            self.w = _regs(o[0]); self.srcC = _regs(o[3]); self.r = _regs(o[1]) | _regs(o[2]) | self.srcC
            self.ab = _regs(o[1]) | _regs(o[2])
        elif self.is_valu:
            self.w = _regs(o[0])
            srcs = o[1:]
            if op.startswith(('v_add_co', 'v_addc_co', 'v_sub_co', 'v_subb_co', 'v_div_scale')):
                self.w |= _regs(o[1]); srcs = o[2:]
            for s in srcs: self.r |= _regs(s)
            if op.startswith(('v_fmac', 'v_dot2c', 'v_writelane')) or self.is_dpp: self.r |= _regs(o[0])
            if op.startswith('v_permlane'): self.w |= _regs(o[1]); self.r |= _regs(o[0])
            if self.is_dpp: self.dppsrc = _regs(o[1])
            if op.startswith('v_cmpx'): self.w |= {'exec'}
        elif self.is_vmem:
            if '_load' in op:
                self.w = _regs(o[0])
                for s in o[1:]: self.r |= _regs(s)
            else:
                for s in o: self.r |= _regs(s)
                d = o[0] if op.startswith('buffer_') else o[1]
                if 'x4' in op or 'x3' in op: self.storedata = _regs(d)
                if 'atomic' in op and 'sc0' in self.mods: self.w = _regs(o[0])
        elif self.is_ds:
            if op.startswith('ds_read') or '_rtn' in op or 'permute' in op or 'swizzle' in op:
                self.w = _regs(o[0])
                for s in o[1:]: self.r |= _regs(s)
            else:
                for s in o: self.r |= _regs(s)
        elif self.is_salu:
            if o and not op.startswith(('s_cmp', 's_waitcnt', 's_nop', 's_branch', 's_cbranch', 's_barrier', 's_sleep', 's_setprio', 's_endpgm', 's_bitcmp')):
                self.w = _regs(o[0])
                for s in o[1:]: self.r |= _regs(s)
                if 'saveexec' in op: self.w |= {'exec'}
            else:
                for s in o: self.r |= _regs(s)
    def states(self):
        if self.op == 's_nop': return int(self.ops[0], 0) + 1
        return 1

def need(p, c):
    n = 0
    isS = lambda regs: {x for x in regs if x[0] == 's' or x == 'vcc'}
    if p.is_valu:
        wv = {x for x in p.w if x[0] in 'va' and x != 'vcc'}
        ws = isS(p.w)
        if c.is_mfma and (wv & c.r): n = max(n, 3 if p.is_dl else 2)
        if c.is_dpp and (wv & c.dppsrc): n = max(n, 2)
        if c.is_dpp and (wv & c.r): n = max(n, 2)
        if c.op.startswith(('v_readlane', 'v_readfirstlane')) and (wv & c.r): n = max(n, 1)
        if c.op.startswith('v_permlane') and (wv & c.r): n = max(n, 2)
        if p.is_trans and c.is_valu and (wv & c.r): n = max(n, 1)
        if p.is_trans and (c.is_vmem or c.is_ds) and (wv & c.r): n = max(n, 1)
        if p.is_dl and (wv & (c.r | c.w)):
            if c.op == p.op and not (wv & (_regs(c.ops[1]) | _regs(c.ops[2]))): pass
            else: n = max(n, 3)
        if ws:
            if c.is_valu and (ws & c.r): n = max(n, 4 if c.op.startswith(('v_readlane', 'v_writelane', 'v_div_fmas')) else 2)
            if c.is_valu and 'vcc' in ws and c.op.startswith('v_div_fmas'): n = max(n, 4)
            if c.is_vmem and (ws & c.r): n = max(n, 5)
            if c.is_salu and (ws & c.r): n = max(n, 1)
            if c.op.startswith('s_cbranch_vcc') and 'vcc' in ws: n = max(n, 1)
        if 'exec' in p.w: n = max(n, 5)
    if p.is_mfma:
        if c.is_mfma:
            if p.w & c.ab: n = max(n, 8)
            if p.w & c.srcC and p.w != c.srcC: n = max(n, 6)
            if p.w & c.w and p.w != c.srcC: n = max(n, 8)
        elif (p.w & (c.r | c.w)): n = max(n, 8)
        if c.is_valu and (p.srcC & c.w): n = max(n, 3)
    if p.is_vmem and p.storedata and (p.storedata & c.w): n = max(n, 2)
    if p.is_salu and 'm0' in p.w and (c.is_vmem and 'lds' in c.mods): n = max(n, 1)
    return n

class Asm:
    def __init__(self):
        self.lines = []
        self.hist = []
        self.vm = []
        self.cond = None
        self.nbytes = 0
    def raw(self, s): self.lines.append(s)
    def comment(self, s): self.lines.append('    ; ' + s)
    def _pad(self, c):
        dist = 0; req = 0
        for p in reversed(self.hist):
            k = need(p, c) - dist
            if k > req: req = k
            dist += p.states()
            if dist >= 12: break
        while req > 0:
            k = min(req, 16)
            nop = Ins(f"s_nop {k-1}")
            self.lines.append(f"    s_nop {k-1}")
            self.hist.append(nop); req -= k
    def __call__(self, text, tag=None):
        c = Ins(text)
        if c.op.startswith(('s_branch', 's_cbranch')): self.settle()
        self._pad(c)
        self.lines.append('    ' + text)
        self.hist.append(c)
        if len(self.hist) > 40: self.hist = self.hist[-24:]
        if c.is_vmem: self.vm.append((tag, self.cond))
        return c
    def settle(self):
        dist = 0; req = 0
        for p in reversed(self.hist):
            worst = 0
            if p.is_mfma: worst = 8
            elif p.is_valu:
                worst = 3 if p.is_dl else 2
                if {x for x in p.w if x[0] == 's' or x in ('vcc', 'exec')}: worst = 5
            elif p.is_vmem and p.storedata: worst = 2
            k = worst - dist - 1
            if k > req: req = k
            dist += p.states()
            if dist >= 12: break
        if req > 0:
            self.lines.append(f"    s_nop {req-1}")
            self.hist.append(Ins(f"s_nop {req-1}"))
    def label(self, name):
        self.lines.append(name + ':')
    def vmwait(self, tag, extra=''):
        idx = max(i for i, (t, _) in enumerate(self.vm) if t == tag)
        n = sum(1 for (t, cnd) in self.vm[idx+1:] if cnd is None or cnd == self.cond)
        n = min(n, 63)
        self(f"s_waitcnt vmcnt({n}){extra}")
        return n
    def text(self): return '\n'.join(self.lines) + '\n'
```

```python
import sys, os, subprocess, struct
sys.path.insert(0, os.path.dirname(os.path.abspath(__file__)))
from asmlib import Asm

NAME = "parallel_sum__mha_block_cached__swiglu_ffn__decode"
KN = NAME + "_kernel"

def fbits(x): return "0x%08x" % struct.unpack("<I", struct.pack("<f", x))[0]

WS_YS = 0
WS_ML = 0xA0000
WS_FP = 0xA2000
WS_END = WS_FP + 864 * 512
OOB = 0x40000000
L_Q, L_O, L_Y, L_CNT, L_R = 0, 2048, 4096, 14336, 14400
LDS_BYTES = 16384

DEF = dict(stamp=False, nk0=16, wqpol="", wopol="", ffpol="nt", prio=True,
           ffn_at=0, arrive_at=72, wo_from=40, wo_step=2,
           poll_at=0, chk_at=32, dep_at=56, use_at=88, spin=20000)

def gen(**kw):
    P = dict(DEF); P.update(kw)
    a = Asm()
    stamp = P['stamp']
    sX, sK, sV, sWQ, sWO, sWG, sWU, sWD, sOUT, sDBG, sWS = 4, 6, 8, 10, 12, 16, 18, 20, 22, 24, 26
    rK, rV, rWQ, rWO, rX, rWD, rWS, rOUT, rDBG, rWG, rWU = 28, 32, 36, 40, 44, 48, 52, 56, 60, 64, 68
    sW, sHEAD, sROT, sOFF, sT0, sT1, sT2, sT3, sCB, sRB = 72, 73, 74, 75, 76, 77, 78, 79, 80, 81
    sC1, sC2, sM2, sLOG2E, sSPIN, sSP = 82, 83, 84, 85, 86, 87
    sST = 88
    R = lambda r: f"s[{r}:{r+3}]"
    vL, vG, vC = 1, 2, 3
    vKV, vWOo, vYS, vML, vLW, vMA, vSEL, vOR, vYW, vYR, vMAX, vLS = 4, 5, 6, 7, 8, 9, 10, 11, 12, 13, 14, 15
    vSC = 16
    vXF = 18
    vXR = 20
    vPOLL = 21
    vFPo, vGU, vWDo = 22, 23, 24
    vT = 26
    vY = 56
    vO = 76
    vA = [80, 84]
    vFA = 88
    vQ = 92
    vS = 96
    vR = 128
    aGU, aWD = 160, 180
    V4 = lambda r: f"v[{r}:{r+3}]"
    V2 = lambda r: f"v[{r}:{r+1}]"
    A4 = lambda r: f"a[{r}:{r+3}]"
    nst = [0]
    def st():
        if stamp:
            k = nst[0]; nst[0] += 1
            assert k < 7
            a(f"s_memrealtime s[{sST+2*k}:{sST+2*k+1}]")
    def srd(r, base, size):
        a(f"s_mov_b32 s{r}, s{base}"); a(f"s_mov_b32 s{r+1}, s{base+1}")
        a(f"s_mov_b32 s{r+2}, {size}"); a(f"s_mov_b32 s{r+3}, 0x20000")
    def srd_off(r, base, soff, size):
        a(f"s_add_u32 s{r}, s{base}, s{soff}"); a(f"s_addc_u32 s{r+1}, s{base+1}, 0")
        a(f"s_mov_b32 s{r+2}, {size}"); a(f"s_mov_b32 s{r+3}, 0x20000")
    FULL = "row_mask:0xf bank_mask:0xf"
    def wave_reduce(op, v, sdst):
        for sh in (8, 4, 2, 1):
            a(f"{op}_dpp v{v}, v{v}, v{v} row_ror:{sh} {FULL}")
        a(f"{op}_dpp v{v}, v{v}, v{v} row_bcast:15 row_mask:0xa bank_mask:0xf")
        a(f"{op}_dpp v{v}, v{v}, v{v} row_bcast:31 row_mask:0xc bank_mask:0xf")
        a(f"v_readlane_b32 s{sdst}, v{v}, 63")
    def build_A(dst, f, sb):
        for k in range(4):
            d = k - sb
            ctl = "quad_perm:[0,1,2,3]" if d == 0 else (f"row_shr:{4*d}" if d > 0 else f"row_shl:{-4*d}")
            a(f"v_mov_b32_dpp v{dst+k}, v{f} {ctl} row_mask:0xf bank_mask:{hex(1<<k)}")
    def mfma(d, av, b, c=None):
        cs = V4(d) if c is None else c
        a(f"v_mfma_f32_16x16x32_bf16 {V4(d)}, {V4(av)}, {b}, {cs}")
    def fmt(dst, p, tmp):
        a(f"v_and_b32 v{tmp}, v{p}, v{vMA}")
        a(f"v_sub_f32 v{tmp}, v{p}, v{tmp}")
        a(f"v_perm_b32 v{dst}, v{tmp}, v{tmp}, v{vSEL}")
    def stream_load(n):
        j = n & 127
        if j % 32 == 0:
            if j == 0: a(f"s_mov_b32 s{sOFF}, s{sROT}")
            else:
                a(f"s_add_u32 s{sOFF}, s{sOFF}, 0x1000"); a(f"s_and_b32 s{sOFF}, s{sOFF}, 0x7ffff")
        else:
            a(f"s_add_u32 s{sOFF}, s{sOFF}, 0x1000")
        r = vR + 4 * (n % 32)
        a(f"buffer_load_dwordx4 {V4(r)}, v{vKV}, {R(rK if n < 128 else rV)}, s{sOFF} offen nt", tag=f"st{n}")

    a.label(KN)
    st()
    a("s_load_dwordx16 s[4:19], s[0:1], 0")
    a("s_load_dwordx8 s[20:27], s[0:1], 64")
    a("s_cmp_ge_u32 s2, 256")
    a("s_cbranch_scc1 L_end")
    if P['prio']: a("s_setprio 3")
    a(f"v_and_b32 v{vL}, 63, v0")
    a(f"v_lshrrev_b32 v{vT}, 6, v0")
    a(f"v_bfe_u32 v{vG}, v0, 4, 2")
    a(f"v_readfirstlane_b32 s{sW}, v{vT}")
    a(f"v_and_b32 v{vC}, 15, v0")
    a(f"v_lshlrev_b32 v{vKV}, 4, v0")
    a(f"s_and_b32 s{sT0}, s2, 7")
    a(f"s_lshr_b32 s{sT1}, s2, 6")
    a(f"s_lshl_b32 s{sROT}, s{sT1}, 17")
    a(f"s_lshl_b32 s{sT0}, s{sT0}, 2")
    a(f"s_add_u32 s{sHEAD}, s{sT0}, s{sT1}")
    a(f"s_bfe_u32 s{sSP}, s2, 0x30003")
    a(f"s_lshl_b32 s{sT0}, s{sHEAD}, 3")
    a(f"s_add_u32 s{sT0}, s{sT0}, s{sSP}")
    a(f"s_lshl_b32 s{sT0}, s{sT0}, 19")
    a(f"s_lshl_b32 s{sT1}, s{sHEAD}, 8")
    xs, xq, wqo = vT + 1, vT + 2, vT + 3
    a(f"v_mul_u32_u24 v{xs}, 20, v{vL}")
    a(f"v_lshrrev_b32 v{xq}, 2, v0")
    a(f"v_mul_u32_u24 v{xq}, 20, v{xq}")
    a(f"v_lshrrev_b32 v{wqo}, 4, v0")
    a(f"v_mul_u32_u24 v{wqo}, 40, v{wqo}")
    a(f"v_lshlrev_b32 v{wqo}, 13, v{wqo}")
    a(f"v_lshl_add_u32 v{wqo}, v{vC}, 4, v{wqo}")
    a(f"s_mul_i32 s{sRB}, s2, 2428")
    a(f"s_lshr_b32 s{sRB}, s{sRB}, 16")
    a(f"s_mul_i32 s{sT2}, s{sRB}, 27")
    a(f"s_sub_u32 s{sCB}, s2, s{sT2}")
    a("s_waitcnt lgkmcnt(0)")
    srd(rX, sX, 1280)
    XS, XQ = vT + 4, vT + 10
    a(f"buffer_load_dwordx4 {V4(XS)}, v{xs}, {R(rX)}, 0 offen", tag="x")
    a(f"buffer_load_dword v{XS+4}, v{xs}, {R(rX)}, 0 offen offset:16", tag="x")
    a(f"buffer_load_dwordx4 {V4(XQ)}, v{xq}, {R(rX)}, 0 offen", tag="x")
    a(f"buffer_load_dword v{XQ+4}, v{xq}, {R(rX)}, 0 offen offset:16", tag="x")
    srd_off(rWQ, sWQ, sT1, 640 * 8192 - 31 * 256)
    srd_off(rK, sK, sT0, 0x80000)
    xf = vT + 16
    a(f"s_mul_i32 s{sT2}, s{sRB}, 80")
    a(f"s_mul_i32 s{sT3}, s{sW}, 20")
    a(f"s_add_u32 s{sT2}, s{sT2}, s{sT3}")
    a(f"v_and_b32 v{xf}, 12, v0")
    a(f"v_add_u32 v{xf}, v{xf}, v{vG}")
    a(f"v_add_u32 v{xf}, s{sT2}, v{xf}")
    a(f"v_lshlrev_b32 v{xf}, 1, v{xf}")
    a(f"v_add_u32 v{vGU}, s{sT2}, v{vG}")
    a(f"v_lshlrev_b32 v{xf+1}, 1, v{vGU}")
    a(f"buffer_load_ushort v{XQ+5}, v{xf}, {R(rX)}, 0 offen", tag="x")
    a(f"buffer_load_ushort v{XS+5}, v{xf+1}, {R(rX)}, 0 offen offset:32", tag="x")
    nk0 = P['nk0']; kiss = 0
    for n in range(40):
        if n == 0: so = "0"
        else:
            a(f"s_mov_b32 s{sT3}, {n*8192}"); so = f"s{sT3}"
        a(f"buffer_load_dwordx4 {A4(4*n)}, v{wqo}, {R(rWQ)}, {so} offen {P['wqpol']}", tag=f"wq{n}")
        while kiss * 40 < (n + 1) * nk0:
            stream_load(kiss); kiss += 1
    if P['prio']: a("s_setprio 0")
    srd_off(rV, sV, sT0, 0x80000)
    a(f"s_mul_i32 s{sT1}, s{sHEAD}, {128*1280}")
    srd_off(rWO, sWO, sT1, 128 * 1280)
    srd(rWD, sWD, 1728 * 1280); srd(rWS, sWS, WS_END); srd(rOUT, sOUT, 1280); srd(rDBG, sDBG, 256)
    srd(rWG, sWG, 640 * 3456); srd(rWU, sWU, 640 * 3456)
    a(f"s_mov_b32 s{sC1}, 3840"); a(f"s_mov_b32 s{sC2}, 7680")
    a(f"s_mov_b32 s{sLOG2E}, {fbits(1.4426950408889634)}")
    for r in range(8): a(f"v_mov_b32 v{vA[0]+r}, 0")
    t0, t1 = vT + 18, vT + 19
    a(f"v_and_b32 v{t0}, 1, v0")
    a(f"v_cmp_eq_u32 vcc, 1, v{t0}")
    a(f"v_mov_b32 v{t0}, 0x0c0c0302"); a(f"v_mov_b32 v{t1}, 0x03020c0c")
    a(f"v_cndmask_b32 v{vSEL}, v{t0}, v{t1}, vcc")
    a(f"v_bfe_i32 v{vMA}, v0, 1, 1")
    sel0, sel1 = vT + 20, vT + 21
    a(f"v_mov_b32 v{t0}, 0x0c0c0c0c")
    a(f"v_bfi_b32 v{sel1}, v{vMA}, v{t0}, v{vSEL}")
    a(f"v_and_b32 v{sel0}, 0xfdfdfdfd, v{sel1}")
    a(f"v_lshlrev_b32 v{vMA}, 16, v{vMA}")
    a(f"v_mov_b32 v{t0}, {L_CNT}"); a(f"v_mov_b32 v{t1}, 0")
    a(f"ds_write_b32 v{t0}, v{t1}")
    a(f"v_lshlrev_b32 v{vLW}, 5, v{vC}")
    a(f"v_lshl_add_u32 v{vLW}, v{vG}, 3, v{vLW}")
    a(f"s_mul_i32 s{sT2}, s{sW}, 2560")
    a(f"v_add_u32 v{vYW}, s{sT2}, v{vLW}")
    a(f"s_lshl_b32 s{sT2}, s{sW}, 9")
    a(f"v_add_u32 v{vLW}, s{sT2}, v{vLW}")
    a.vmwait("x")
    E = vT + 22
    E = vS
    a(f"v_lshl_or_b32 v{XQ+5}, v{XS+5}, 16, v{XQ+5}")
    for i in range(5):
        a(f"v_lshlrev_b32 v{E+2*i}, 16, v{XS+i}")
        a(f"v_and_b32 v{E+2*i+1}, 0xffff0000, v{XS+i}")
    sm = E + 10
    a(f"v_pk_add_f32 {V2(sm)}, {V2(E)}, {V2(E+2)}")
    a(f"v_pk_add_f32 {V2(sm+2)}, {V2(E+4)}, {V2(E+6)}")
    a(f"v_pk_add_f32 {V2(sm)}, {V2(sm)}, {V2(E+8)}")
    a(f"v_pk_add_f32 {V2(sm)}, {V2(sm)}, {V2(sm+2)}")
    a(f"v_add_f32 v{sm}, v{sm}, v{sm+1}")
    wave_reduce("v_add_f32", sm, sT0)
    mu = E + 14
    a(f"v_mov_b32 v{mu}, {fbits(-1.0/640)}")
    a(f"v_mul_f32 v{mu}, s{sT0}, v{mu}")
    a(f"v_mov_b32 v{mu+1}, v{mu}")
    for i in range(5): a(f"v_pk_add_f32 {V2(E+2*i)}, {V2(E+2*i)}, {V2(mu)}")
    a(f"v_pk_mul_f32 {V2(sm)}, {V2(E)}, {V2(E)}")
    for i in range(1, 5): a(f"v_pk_fma_f32 {V2(sm)}, {V2(E+2*i)}, {V2(E+2*i)}, {V2(sm)}")
    a(f"v_add_f32 v{sm}, v{sm}, v{sm+1}")
    wave_reduce("v_add_f32", sm, sT0)
    a(f"v_cvt_pk_bf16_f32 v{mu}, v{mu}, v{mu}")
    a(f"v_and_b32 v{mu}, 0xffff0000, v{mu}")
    a(f"v_mov_b32 v{mu+1}, v{mu}")
    sd, rc = E + 16, E + 18
    a(f"v_mov_b32 v{sd}, {fbits(1.0/640)}")
    a(f"v_mul_f32 v{sd}, s{sT0}, v{sd}")
    a(f"v_cvt_pk_bf16_f32 v{sd}, v{sd}, v{sd}")
    a(f"v_and_b32 v{sd}, 0xffff0000, v{sd}")
    a(f"v_add_f32 v{sd}, {fbits(1e-5)}, v{sd}")
    a(f"v_cvt_pk_bf16_f32 v{sd}, v{sd}, v{sd}")
    a(f"v_and_b32 v{sd}, 0xffff0000, v{sd}")
    a(f"v_sqrt_f32 v{sd}, v{sd}")
    a(f"v_cvt_pk_bf16_f32 v{sd}, v{sd}, v{sd}")
    a(f"v_and_b32 v{sd}, 0xffff0000, v{sd}")
    a(f"v_rcp_f32 v{rc}, v{sd}")
    a(f"v_sub_f32 v{sd}, 0, v{sd}")
    a(f"v_mov_b32 v{sd+1}, v{sd}")
    a(f"v_mov_b32 v{rc+1}, v{rc}")
    F = vT + 22
    D0 = E
    Q0 = E + 20
    for i in range(6):
        a(f"v_lshlrev_b32 v{D0+2*i}, 16, v{XQ+i}")
        a(f"v_and_b32 v{D0+2*i+1}, 0xffff0000, v{XQ+i}")
    for i in range(6): a(f"v_pk_add_f32 {V2(D0+2*i)}, {V2(D0+2*i)}, {V2(mu)}")
    for i in range(6): a(f"v_cvt_pk_bf16_f32 v{XQ+i}, v{D0+2*i}, v{D0+2*i+1}")
    for i in range(6):
        a(f"v_lshlrev_b32 v{D0+2*i}, 16, v{XQ+i}")
        a(f"v_and_b32 v{D0+2*i+1}, 0xffff0000, v{XQ+i}")
    for i in range(6): a(f"v_pk_mul_f32 {V2(Q0+2*i)}, {V2(D0+2*i)}, {V2(rc)}")
    for i in range(6): a(f"v_pk_fma_f32 {V2(D0+2*i)}, {V2(Q0+2*i)}, {V2(sd)}, {V2(D0+2*i)}")
    for i in range(6): a(f"v_pk_fma_f32 {V2(Q0+2*i)}, {V2(D0+2*i)}, {V2(rc)}, {V2(Q0+2*i)}")
    for i in range(6): a(f"v_cvt_pk_bf16_f32 v{XQ+i}, v{Q0+2*i}, v{Q0+2*i+1}")
    for i in range(6):
        d = F + 2 * i if i < 5 else vXF
        a(f"v_perm_b32 v{d}, v{XQ+i}, v{XQ+i}, v{sel0}")
        a(f"v_perm_b32 v{d+1}, v{XQ+i}, v{XQ+i}, v{sel1}")
    st()
    build_A(vA[0], F, 0)
    for n in range(40):
        if n + 1 < 40: build_A(vA[(n + 1) & 1], F + (n + 1) % 10, (n + 1) // 10)
        if n % 2 == 0: a.vmwait(f"wq{n+1}")
        mfma(vO, vA[n & 1], A4(4 * n), "0" if n == 0 else None)
        while kiss < 32 and (kiss - nk0) * 40 < (n + 1) * (32 - nk0):
            stream_load(kiss); kiss += 1
    assert kiss == 32
    a(f"ds_write_b64 v{vLW}, {V2(vO)} offset:{L_Q}")
    a(f"v_lshlrev_b32 v{t0}, 5, v{vC}")
    a("s_waitcnt lgkmcnt(0)")
    a("s_barrier")
    for w in range(4):
        a(f"ds_read_b128 {V4(E+8*w)}, v{t0} offset:{L_Q+512*w}")
        a(f"ds_read_b128 {V4(E+8*w+4)}, v{t0} offset:{L_Q+512*w+16}")
    a("s_waitcnt lgkmcnt(4)")
    for i in range(4): a(f"v_pk_add_f32 {V2(E+2*i)}, {V2(E+2*i)}, {V2(E+8+2*i)}")
    a("s_waitcnt lgkmcnt(0)")
    for i in range(4): a(f"v_pk_add_f32 {V2(E+16+2*i)}, {V2(E+16+2*i)}, {V2(E+24+2*i)}")
    for i in range(4): a(f"v_pk_add_f32 {V2(E+2*i)}, {V2(E+2*i)}, {V2(E+16+2*i)}")
    for i in range(4): a(f"v_cvt_pk_bf16_f32 v{vQ+i}, v{E+2*i}, v{E+2*i+1}")
    a(f"v_mov_b32 v{vMAX}, 0xff800000")
    st()

    def hook_misc():
        a(f"v_lshrrev_b32 v{t0}, 2, v0")
        a(f"v_lshlrev_b32 v{t0}, 14, v{t0}")
        a(f"v_and_b32 v{t1}, 3, v0")
        a(f"v_lshl_add_u32 v{t0}, v{t1}, 4, v{t0}")
        a(f"s_lshl_b32 s{sT0}, s2, 6")
        a(f"v_add_u32 v{t0}, s{sT0}, v{t0}")
        a(f"v_mov_b32 v{t1}, {OOB}")
        a(f"v_cmp_gt_u32 vcc, 160, v0")
        a(f"v_cndmask_b32 v{vYS}, v{t1}, v{t0}, vcc")
        a(f"s_lshl_b32 s{sT0}, s{sHEAD}, 8")
        a(f"s_lshl_b32 s{sT1}, s{sSP}, 5")
        a(f"s_add_u32 s{sT0}, s{sT0}, s{sT1}")
        a(f"s_lshl_b32 s{sT1}, s{sW}, 3")
        a(f"s_add_u32 s{sT0}, s{sT0}, s{sT1}")
        a(f"s_add_u32 s{sT0}, s{sT0}, {WS_ML}")
        a(f"v_mov_b32 v{t0}, s{sT0}")
        a(f"v_cmp_eq_u32 vcc, 0, v{vL}")
        a(f"v_cndmask_b32 v{vML}, v{t1}, v{t0}, vcc")
        a(f"v_cndmask_b32 v{vPOLL}, v{t1}, 0, vcc")
        for r in range(4): a(f"v_mov_b32 v{vT+4+r}, -1")
        a(f"buffer_store_dwordx4 {V4(vT+4)}, v{vYS}, {R(rWS)}, 0 offen sc1", tag="sent")
        a(f"buffer_store_dwordx2 {V2(vT+4)}, v{vML}, {R(rWS)}, 0 offen sc1", tag="sent")
        a(f"v_lshrrev_b32 v{t0}, 4, v0")
        a(f"v_mul_u32_u24 v{t0}, 10240, v{t0}")
        a(f"v_lshl_add_u32 v{vWOo}, v{vC}, 4, v{t0}")
        a(f"v_lshrrev_b32 v{t0}, 2, v0")
        a(f"v_lshlrev_b32 v{vOR}, 3, v{t0}")
        a(f"v_add_u32 v{vOR}, {L_O}, v{vOR}")
        a(f"v_min_u32 v{t0}, 159, v0")
        a(f"v_lshlrev_b32 v{vYR}, 4, v{t0}")
        a(f"s_lshl_b32 s{sT0}, s2, 3")
        a(f"s_lshl_b32 s{sT1}, s{sW}, 1")
        a(f"s_add_u32 s{sT0}, s{sT0}, s{sT1}")
        a(f"v_add_u32 v{t0}, s{sT0}, v{vG}")
        a(f"v_mul_u32_u24 v{t0}, 1280, v{t0}")
        a(f"v_lshl_add_u32 v{t0}, v{vC}, 4, v{t0}")
        a(f"v_cmp_gt_u32 vcc, 2, v{vG}")
        a(f"v_cndmask_b32 v{vWDo}, v{t1}, v{t0}, vcc")
        a(f"s_sub_u32 s{sT0}, s2, 216")
        a(f"s_and_b32 s{sT0}, s{sT0}, 0xffff")
        a(f"s_lshl_b32 s{sT0}, s{sT0}, 5")
        a(f"v_lshlrev_b32 v{t0}, 1, v{vC}")
        a(f"buffer_load_ushort v{vXR}, v{t0}, {R(rX)}, s{sT0} offen", tag="xr")
    def hook_ffn_load():
        a(f"v_mul_u32_u24 v{vGU}, 3456, v{vGU}")
        a(f"v_and_b32 v{t0}, 7, v0")
        a(f"v_lshl_add_u32 v{vGU}, v{t0}, 4, v{vGU}")
        a(f"s_lshl_b32 s{sT0}, s{sCB}, 7")
        a(f"v_add_u32 v{vGU}, s{sT0}, v{vGU}")
        a(f"v_lshl_add_u32 v{t0}, v{t0}, 2, v{vG}")
        a(f"v_lshlrev_b32 v{t0}, 9, v{t0}")
        a(f"v_bfe_u32 v{t1}, v0, 3, 1")
        a(f"v_lshl_add_u32 v{t0}, v{t1}, 8, v{t0}")
        a(f"s_lshl_b32 s{sT0}, s{sCB}, 14")
        a(f"s_lshl_b32 s{sT1}, s{sRB}, 5")
        a(f"s_add_u32 s{sT0}, s{sT0}, s{sT1}")
        a(f"s_lshl_b32 s{sT1}, s{sW}, 3")
        a(f"s_add_u32 s{sT0}, s{sT0}, s{sT1}")
        a(f"s_add_u32 s{sT0}, s{sT0}, {WS_FP}")
        a(f"s_cmp_ge_u32 s2, 216")
        a(f"s_cselect_b32 s{sT0}, {OOB}, s{sT0}")
        a(f"v_add_u32 v{vFPo}, s{sT0}, v{t0}")
        for m, r in enumerate((rWG, rWU)):
            msk = "0x00ff00ff" if m == 0 else "0xff00ff00"
            a(f"s_mov_b32 exec_lo, {msk}"); a(f"s_mov_b32 exec_hi, {msk}")
            for t in range(5):
                if t == 0: so = "0"
                else:
                    a(f"s_mov_b32 s{sT0}, {t*13824}"); so = f"s{sT0}"
                a(f"buffer_load_dwordx4 {A4(aGU+4*t)}, v{vGU}, {R(r)}, {so} offen {P['ffpol']}", tag="gu")
        a("s_mov_b64 exec, -1")
        for T in range(5):
            a(f"buffer_load_dwordx4 {A4(aWD+4*T)}, v{vWDo}, {R(rWD)}, 0 offen offset:{256*T} {P['ffpol']}", tag="wd")
    def hook_ffn1():
        a.vmwait("gu")
        for t in range(5):
            build_A(vA[t & 1], vXF + (t >> 2), t & 3)
            mfma(vFA, vA[t & 1], A4(aGU + 4 * t), "0" if t == 0 else None)
        a(f"buffer_store_dwordx2 {V2(vFA)}, v{vFPo}, {R(rWS)}, 0 offen sc1", tag="fp")
    def hook_arrive():
        a.vmwait("fp")
        a(f"v_mov_b32 v{t0}, {L_CNT}"); a(f"v_mov_b32 v{t1}, 1")
        a("s_mov_b64 exec, 1")
        a(f"ds_add_rtn_u32 v{t0}, v{t0}, v{t1}")
        a("s_mov_b64 exec, -1")
        a("s_waitcnt lgkmcnt(0)")
        a(f"v_readfirstlane_b32 s{sT0}, v{t0}")
        a(f"s_cmp_eq_u32 s{sT0}, 3")
        a(f"s_cselect_b32 s{sT0}, 0, {OOB}")
        a(f"buffer_atomic_add v{t1}, v{vPOLL}, {R(rDBG)}, s{sT0} offen sc1", tag="arr")
    def wo_load(n):
        rg, T = n // 5, n % 5
        so = ["0", f"s{sC1}", f"s{sC2}"][rg // 3]
        a(f"buffer_load_dwordx4 {A4(4*n)}, v{vWOo}, {R(rWO)}, {so} offen offset:{(rg%3)*1280+T*256} {P['wopol']}", tag=f"wo{n}")
    def hook_poll():
        a(f"buffer_load_dword v{vPOLL}, off, {R(rDBG)}, 0 sc1", tag="poll")
    def hook_chk():
        a.vmwait("poll")
        a(f"s_mov_b32 s{sSPIN}, {P['spin']}")
        a.label("L_c1")
        a(f"v_readfirstlane_b32 s{sT0}, v{vPOLL}")
        a(f"s_cmp_ge_u32 s{sT0}, 256")
        a("s_cbranch_scc1 L_c1_done")
        a(f"s_sub_u32 s{sSPIN}, s{sSPIN}, 1")
        a("s_cbranch_scc1 L_c1_done")
        a.cond = "spin"
        a(f"buffer_load_dword v{vPOLL}, off, {R(rDBG)}, 0 sc1")
        a.cond = None
        a("s_waitcnt vmcnt(0)")
        a("s_branch L_c1")
        a.label("L_c1_done")
    MLV, FPV, mlo = vT + 4, vT + 6, vT + 8
    def hook_dep():
        a(f"v_and_b32 v{mlo}, 31, v0")
        a(f"v_lshlrev_b32 v{mlo}, 3, v{mlo}")
        a(f"s_lshl_b32 s{sT0}, s{sHEAD}, 8")
        a(f"s_add_u32 s{sT0}, s{sT0}, {WS_ML}")
        a(f"v_add_u32 v{mlo}, s{sT0}, v{mlo}")
        a(f"v_lshlrev_b32 v{t0}, 3, v0")
        a(f"s_lshl_b32 s{sT0}, s2, 11")
        a(f"s_add_u32 s{sT0}, s{sT0}, {WS_FP}")
        a(f"buffer_load_dwordx2 {V2(FPV)}, v{t0}, {R(rWS)}, s{sT0} offen sc1", tag="dep")
        a(f"buffer_load_dwordx2 {V2(MLV)}, v{mlo}, {R(rWS)}, 0 offen sc1", tag="dep")
    def hook_use():
        a.vmwait("dep")
        a(f"s_mov_b32 s{sSPIN}, {P['spin']}")
        a.label("L_ml")
        a(f"v_cmp_eq_u32 vcc, -1, v{MLV+1}")
        a("s_cbranch_vccz L_ml_done")
        a(f"s_sub_u32 s{sSPIN}, s{sSPIN}, 1")
        a("s_cbranch_scc1 L_ml_done")
        a.cond = "spin"
        a(f"buffer_load_dwordx2 {V2(MLV)}, v{mlo}, {R(rWS)}, 0 offen sc1")
        a.cond = None
        a("s_waitcnt vmcnt(0)")
        a("s_branch L_ml")
        a.label("L_ml_done")
        a(f"v_mov_b32 v{t0}, v{MLV}")
        wave_reduce("v_max_f32", t0, sT0)
        a(f"v_subrev_f32 v{t0}, s{sT0}, v{MLV}")
        a(f"v_exp_f32 v{t0}, v{t0}")
        a(f"v_mul_f32 v{t0}, v{t0}, v{MLV+1}")
        wave_reduce("v_add_f32", t0, sT1)
        a(f"v_mov_b32 v{t0}, s{sM2}")
        a(f"v_subrev_f32 v{t0}, s{sT0}, v{t0}")
        a(f"v_exp_f32 v{t0}, v{t0}")
        a(f"v_rcp_f32 v{t1}, s{sT1}")
        a(f"v_add_f32 v{t0}, v{t0}, v{t0}")
        a(f"v_mul_f32 v{vSC}, v{t0}, v{t1}")
        a(f"v_mov_b32 v{vSC+1}, v{vSC}")
        for sh in (8, 4, 2, 1):
            for r in (FPV, FPV + 1): a(f"v_add_f32_dpp v{r}, v{r}, v{r} row_ror:{sh} {FULL}")
        for r in (FPV, FPV + 1): a(f"v_add_f32_dpp v{r}, v{r}, v{r} row_bcast:15 row_mask:0xa bank_mask:0xf")
        a(f"v_cvt_pk_bf16_f32 v{t0}, v{FPV}, v{FPV+1}")
        a(f"v_readlane_b32 s{sT0}, v{t0}, 31")
        a(f"v_readlane_b32 s{sT1}, v{t0}, 63")
        sh_ = vT + 9
        a(f"v_and_b32 v{sh_}, 16, v0")
        a(f"v_xor_b32 v{sh_}, 16, v{sh_}")
        a(f"v_lshlrev_b32 v{t0}, v{sh_}, s{sT0}")
        a(f"v_lshlrev_b32 v{t1}, v{sh_}, s{sT1}")
        a(f"v_and_b32 v{t0}, 0xffff0000, v{t0}")
        a(f"v_and_b32 v{t1}, 0xffff0000, v{t1}")
        e = vT + 10
        a(f"v_mul_f32 v{e}, {fbits(-1.4426950408889634)}, v{t0}")
        a(f"v_exp_f32 v{e}, v{e}")
        a(f"v_add_f32 v{e}, 1.0, v{e}")
        a(f"v_rcp_f32 v{e}, v{e}")
        a(f"v_mul_f32 v{e}, v{t0}, v{e}")
        a(f"v_cvt_pk_bf16_f32 v{e}, v{e}, v{e}")
        a(f"v_and_b32 v{e}, 0xffff0000, v{e}")
        a(f"v_mul_f32 v{e}, v{e}, v{t1}")
        a(f"v_cvt_pk_bf16_f32 v{e}, v{e}, v{e}")
        a(f"v_and_b32 v{e}, 0xffff0000, v{e}")
        fmt(e, e, t0)
        for r in range(4): a(f"v_mov_b32 v{vFA+r}, 0")
        for k in range(4):
            a(f"v_mov_b32_dpp v{vFA+k}, v{e} quad_perm:[0,1,2,3] row_mask:0xf bank_mask:{hex(1<<k)}")
        a.vmwait("wd")
        for T in range(5): mfma(vY + 4 * T, vFA, A4(aWD + 4 * T), "0")

    TT = vT + 22
    won = 0
    for t in range(32):
        j0 = 4 * t
        a.vmwait(f"st{j0+3}")
        for e in range(4):
            for i in range(4):
                r = vR + 4 * ((j0 + i) % 32)
                if e == 0: a(f"v_dot2_f32_bf16 v{TT+i}, v{r}, v{vQ}, 0")
                else: a(f"v_dot2c_f32_bf16 v{TT+i}, v{r+e}, v{vQ+e}")
        for i in range(4):
            stream_load(j0 + 32 + i)
            j = j0 + i
            if j >= P['wo_from'] and (j - P['wo_from']) % P['wo_step'] == 0 and won < 40:
                wo_load(won); won += 1
        a(f"v_add_f32_dpp v{TT}, v{TT}, v{TT} row_ror:8 row_mask:0xf bank_mask:0x3")
        a(f"v_add_f32_dpp v{TT+1}, v{TT+1}, v{TT+1} row_ror:8 row_mask:0xf bank_mask:0x3")
        a(f"v_add_f32_dpp v{TT}, v{TT+2}, v{TT+2} row_ror:8 row_mask:0xf bank_mask:0xc")
        a(f"v_add_f32_dpp v{TT+1}, v{TT+3}, v{TT+3} row_ror:8 row_mask:0xf bank_mask:0xc")
        s = vS + t
        a(f"v_add_f32_dpp v{s}, v{TT}, v{TT} row_shl:4 row_mask:0xf bank_mask:0x5")
        a(f"v_add_f32_dpp v{s}, v{TT+1}, v{TT+1} row_shr:4 row_mask:0xf bank_mask:0xa")
        a(f"v_add_f32_dpp v{s}, v{s}, v{s} quad_perm:[1,0,3,2] {FULL}")
        a(f"v_add_f32_dpp v{s}, v{s}, v{s} quad_perm:[2,3,0,1] {FULL}")
        if t & 1:
            p = s - 1
            a(f"v_cvt_pk_bf16_f32 v{TT}, v{p}, v{s}")
            a(f"v_lshlrev_b32 v{p}, 16, v{TT}")
            a(f"v_and_b32 v{s}, 0xffff0000, v{TT}")
            a(f"v_mul_f32 v{p}, {fbits(128 ** -0.5)}, v{p}")
            a(f"v_mul_f32 v{s}, {fbits(128 ** -0.5)}, v{s}")
            a(f"v_cvt_pk_bf16_f32 v{TT}, v{p}, v{s}")
            a(f"v_lshlrev_b32 v{p}, 16, v{TT}")
            a(f"v_and_b32 v{s}, 0xffff0000, v{TT}")
            a(f"v_max3_f32 v{vMAX}, v{p}, v{s}, v{vMAX}")
        if j0 == P['ffn_at']: hook_misc(); hook_ffn_load()
        if j0 == P['ffn_at'] + 36: hook_ffn1()
        if j0 == P['arrive_at']: hook_arrive()
    assert won == 40, won
    st()
    wave_reduce("v_max_f32", vMAX, sT0)
    a(f"v_mov_b32 v{vMAX}, s{sT0}")
    a(f"v_mul_f32 v{vMAX}, s{sLOG2E}, v{vMAX}")
    a(f"v_readfirstlane_b32 s{sM2}, v{vMAX}")
    a(f"v_sub_f32 v{vMAX}, 0, v{vMAX}")
    a(f"v_mov_b32 v{vLS}, 0")
    def softmax_regs(ts):
        for t in ts: a(f"v_fma_f32 v{vS+t}, v{vS+t}, s{sLOG2E}, v{vMAX}")
        for t in ts: a(f"v_exp_f32 v{vS+t}, v{vS+t}")
        for t in ts:
            a(f"v_add_f32 v{vLS}, v{vLS}, v{vS+t}")
            fmt(vS + t, vS + t, TT + (t & 3))
    softmax_regs(range(0, 8))
    build_A(vA[0], vS, 0)
    for t in range(32):
        j0 = 4 * t
        if j0 == P['poll_at']: hook_poll()
        a.vmwait(f"st{128+j0+3}")
        for i in range(4):
            j = j0 + i
            if j + 1 < 128: build_A(vA[(j + 1) & 1], vS + (j + 1) // 4, (j + 1) & 3)
            mfma(vO, vA[j & 1], V4(vR + 4 * (j % 32)), "0" if j == 0 else None)
        if j0 + 32 < 128:
            for i in range(4): stream_load(128 + j0 + 32 + i)
        if t < 3: softmax_regs(range(8 * t + 8, 8 * t + 16))
        if t == 3:
            wave_reduce("v_add_f32", vLS, sT0)
            a(f"v_mov_b32 v{TT}, s{sM2}")
            a(f"v_mov_b32 v{TT+1}, 0.25")
            a(f"v_mul_f32 v{TT+1}, s{sT0}, v{TT+1}")
            a(f"v_min_u32 v{TT+1}, -2, v{TT+1}")
            a(f"buffer_store_dwordx2 {V2(TT)}, v{vML}, {R(rWS)}, 0 offen sc1", tag="ml")
        if j0 == P['chk_at']: hook_chk()
        if j0 == P['dep_at']: hook_dep()
        if j0 == P['use_at']: hook_use()
    st()
    a(f"v_pk_add_f32 {V2(vO)}, {V2(vO)}, {V2(vO+2)}")
    a(f"v_pk_mul_f32 {V2(vO)}, {V2(vO)}, {V2(vSC)}")
    a(f"ds_write_b64 v{vLW}, {V2(vO)} offset:{L_O}")
    a("s_waitcnt lgkmcnt(0)")
    a("s_barrier")
    E = vS
    a(f"ds_read2_b64 {V4(E)}, v{vOR} offset0:0 offset1:64")
    a(f"ds_read2_b64 {V4(E+4)}, v{vOR} offset0:128 offset1:192")
    a("s_waitcnt lgkmcnt(0)")
    a(f"v_pk_add_f32 {V2(E)}, {V2(E)}, {V2(E+2)}")
    a(f"v_pk_add_f32 {V2(E+4)}, {V2(E+4)}, {V2(E+6)}")
    a(f"v_pk_add_f32 {V2(E)}, {V2(E)}, {V2(E+4)}")
    fmt(E, E, E + 2)
    build_A(vA[0], E, 0)
    fmt(E + 1, E + 1, E + 3)
    for rg in range(8):
        for T in range(5):
            mfma(vY + 4 * T, vA[rg & 1], A4(4 * (5 * rg + T)))
            if T == 0 and rg + 1 < 8: build_A(vA[(rg + 1) & 1], E + ((rg + 1) & 1), (rg + 1) >> 1)
    for T in range(5):
        a(f"v_pk_add_f32 {V2(vY+4*T)}, {V2(vY+4*T)}, {V2(vY+4*T+2)}")
        a(f"ds_write_b64 v{vYW}, {V2(vY+4*T)} offset:{L_Y+512*T}")
    a("s_waitcnt lgkmcnt(0)")
    a("s_barrier")
    for w in range(4): a(f"ds_read_b128 {V4(E+4*w)}, v{vYR} offset:{L_Y+2560*w}")
    a("s_waitcnt lgkmcnt(2)")
    a(f"v_pk_add_f32 {V2(E)}, {V2(E)}, {V2(E+4)}")
    a(f"v_pk_add_f32 {V2(E+2)}, {V2(E+2)}, {V2(E+6)}")
    a("s_waitcnt lgkmcnt(0)")
    a(f"v_pk_add_f32 {V2(E+8)}, {V2(E+8)}, {V2(E+12)}")
    a(f"v_pk_add_f32 {V2(E+10)}, {V2(E+10)}, {V2(E+14)}")
    a(f"v_pk_add_f32 {V2(E)}, {V2(E)}, {V2(E+8)}")
    a(f"v_pk_add_f32 {V2(E+2)}, {V2(E+2)}, {V2(E+10)}")
    for r in range(4): a(f"v_min_u32 v{E+r}, -2, v{E+r}")
    a(f"buffer_store_dwordx4 {V4(E)}, v{vYS}, {R(rWS)}, 0 offen sc1")
    st()
    a("s_cmp_lt_u32 s2, 216")
    a("s_cbranch_scc1 L_fin")
    a(f"s_sub_u32 s{sT0}, s2, 216")
    a(f"s_lshl_b32 s{sT1}, s{sT0}, 14")
    a(f"s_mul_i32 s{sT2}, s{sW}, 3072")
    a(f"s_add_u32 s{sT1}, s{sT1}, s{sT2}")
    a(f"s_mov_b32 s{sSPIN}, {P['spin']}")
    Rr = vR
    a.label("L_red")
    for k in range(4):
        a(f"buffer_load_dwordx4 {V4(Rr+4*k)}, v{vKV}, {R(rWS)}, s{sT1} offen offset:{1024*k} sc1")
    a(f"s_sub_u32 s{sSPIN}, s{sSPIN}, 1")
    a("s_cbranch_scc1 L_red_done")
    m0_, m1_ = vT, vT + 1
    a("s_waitcnt vmcnt(3)")
    a(f"v_max3_u32 v{m0_}, v{Rr}, v{Rr+1}, v{Rr+2}")
    a("s_waitcnt vmcnt(2)")
    a(f"v_max3_u32 v{m1_}, v{Rr+3}, v{Rr+4}, v{Rr+5}")
    a(f"v_max3_u32 v{m0_}, v{m0_}, v{Rr+6}, v{Rr+7}")
    a("s_waitcnt vmcnt(1)")
    a(f"v_max3_u32 v{m1_}, v{m1_}, v{Rr+8}, v{Rr+9}")
    a(f"v_max3_u32 v{m0_}, v{m0_}, v{Rr+10}, v{Rr+11}")
    a("s_waitcnt vmcnt(0)")
    a(f"v_max3_u32 v{m1_}, v{m1_}, v{Rr+12}, v{Rr+13}")
    a(f"v_max3_u32 v{m0_}, v{m0_}, v{Rr+14}, v{Rr+15}")
    a(f"v_max_u32 v{m0_}, v{m0_}, v{m1_}")
    a(f"v_cmp_eq_u32 vcc, -1, v{m0_}")
    a("s_cbranch_vccnz L_red")
    a.label("L_red_done")
    a("s_waitcnt vmcnt(0)")
    for h in (0, 2):
        a(f"v_pk_add_f32 {V2(Rr+h)}, {V2(Rr+h)}, {V2(Rr+4+h)}")
        a(f"v_pk_add_f32 {V2(Rr+8+h)}, {V2(Rr+8+h)}, {V2(Rr+12+h)}")
    for h in (0, 2): a(f"v_pk_add_f32 {V2(Rr+h)}, {V2(Rr+h)}, {V2(Rr+8+h)}")
    a(f"v_permlane32_swap_b32 v{Rr}, v{Rr+2}")
    a(f"v_permlane32_swap_b32 v{Rr+1}, v{Rr+3}")
    a(f"v_pk_add_f32 {V2(Rr)}, {V2(Rr)}, {V2(Rr+2)}")
    a(f"v_permlane16_swap_b32 v{Rr}, v{Rr+1}")
    a(f"v_add_f32 v{Rr}, v{Rr}, v{Rr+1}")
    a(f"v_and_b32 v{m0_}, 3, v0")
    a(f"v_lshl_add_u32 v{m0_}, v{m0_}, 2, v{vG}")
    a(f"v_add_f32_dpp v{Rr}, v{Rr}, v{Rr} row_ror:4 {FULL}")
    a(f"v_lshlrev_b32 v{m0_}, 4, v{m0_}")
    a(f"s_lshl_b32 s{sT2}, s{sW}, 2")
    a(f"v_add_f32_dpp v{Rr}, v{Rr}, v{Rr} row_ror:8 {FULL}")
    a(f"v_add_u32 v{m0_}, s{sT2}, v{m0_}")
    a(f"ds_write_b32 v{m0_}, v{Rr} offset:{L_R}")
    a(f"v_lshlrev_b32 v{m1_}, 4, v{vC}")
    a(f"v_lshlrev_b32 v{vXR}, 16, v{vXR}")
    a(f"v_lshlrev_b32 v{m0_}, 1, v0")
    a(f"s_lshl_b32 s{sT0}, s{sT0}, 5")
    a("s_waitcnt lgkmcnt(0)")
    a("s_barrier")
    a(f"ds_read_b128 {V4(Rr)}, v{m1_} offset:{L_R}")
    a(f"v_cmp_gt_u32 vcc, 16, v0")
    a(f"v_mov_b32 v{m1_}, {OOB}")
    a(f"v_cndmask_b32 v{m0_}, v{m1_}, v{m0_}, vcc")
    a("s_waitcnt lgkmcnt(0)")
    a(f"v_pk_add_f32 {V2(Rr)}, {V2(Rr)}, {V2(Rr+2)}")
    a(f"v_add_f32 v{Rr}, v{Rr}, v{Rr+1}")
    a(f"v_add_f32 v{Rr}, v{Rr}, v{vXR}")
    a(f"v_cvt_pk_bf16_f32 v{Rr}, v{Rr}, v{Rr}")
    a(f"buffer_store_short v{Rr}, v{m0_}, {R(rOUT)}, s{sT0} offen")
    a.label("L_fin")
    if stamp:
        a("s_waitcnt vmcnt(0)")
        st()
        a("s_waitcnt lgkmcnt(0)")
        a(f"s_cmp_lg_u32 s{sW}, 0")
        a("s_cbranch_scc1 L_end")
        a("s_getreg_b32 s3, hwreg(HW_REG_XCC_ID)")
        a(f"s_lshl_b32 s{sT0}, s2, 6")
        a(f"s_add_u32 s{rWS}, s{sWS}, s{sT0}"); a(f"s_addc_u32 s{rWS+1}, s{sWS+1}, 0")
        a(f"s_add_u32 s{rWS}, s{rWS}, 0x10000000"); a(f"s_addc_u32 s{rWS+1}, s{rWS+1}, 0")
        order = [0, 1, None, 2, 3, 4, 5, 6]
        a("s_mov_b64 exec, 1")
        for slot, k in enumerate(order):
            if k is None:
                a("v_mov_b32 v2, 0"); a("v_mov_b32 v3, s3")
            else:
                a(f"v_mov_b32 v2, s{sST+2*k}"); a(f"v_mov_b32 v3, s{sST+2*k+1}")
            a(f"buffer_store_dwordx2 v[2:3], off, {R(rWS)}, 0 offset:{8*slot}")
            a("s_nop 1")
    a.label("L_end")
    a("s_endpgm")
    return a.text()

HEADER_SRC = "cdna_kernels/" + NAME + ".s.ref"

def full_text(body):
    hdr = []
    for l in open(HEADER_SRC):
        if l.startswith("; @launch"): break
        hdr.append(l.rstrip("\n"))
    hdr.append(f"; @launch grid=(256,1,1) block=(256,1,1) lds={LDS_BYTES}")
    s = "\n".join(hdr) + "\n"
    s += '.amdgcn_target "amdgcn-amd-amdhsa--gfx950"\n.text\n'
    s += f".globl {KN}\n.p2align 8\n.type {KN},@function\n"
    s += body
    s += f""".section .rodata,"a"
.p2align 6
.amdhsa_kernel {KN}
  .amdhsa_next_free_vgpr 512
  .amdhsa_next_free_sgpr 102
  .amdhsa_accum_offset 256
  .amdhsa_group_segment_fixed_size 0
  .amdhsa_kernarg_size 96
  .amdhsa_user_sgpr_count 2
  .amdhsa_user_sgpr_kernarg_segment_ptr 1
  .amdhsa_system_sgpr_workgroup_id_x 1
.end_amdhsa_kernel
"""
    return s

def build_co(text, out):
    sys.path.insert(0, "cdna_kernels")
    from cdna_launch import with_harness_metadata
    hs = out + ".hs.s"
    open(hs, "w").write(with_harness_metadata(text, KN, 12, launch_lists=True))
    subprocess.check_call(["clang", "-x", "assembler", "-target", "amdgcn-amd-amdhsa",
                           "-mcpu=gfx950", hs, "-o", out])
    os.remove(hs)

def parse(args):
    kw = {}
    for s in args:
        k, v = s.split("=", 1)
        try: v = int(v, 0)
        except ValueError: pass
        kw[k] = v
    return kw

if __name__ == "__main__":
    out = sys.argv[1]; kw = parse(sys.argv[2:])
    if out.endswith(".co"):
        kw.setdefault("stamp", True)
        build_co(full_text(gen(**kw)), out)
    else:
        open(out, "w").write(full_text(gen(**kw)))
```
